```python
import torch

def _softmax(x, axis=-1):
    return torch.softmax(x, dim=axis)
def _gelu(x):
    return torch.nn.functional.gelu(x, approximate="tanh")
def _silu(x):
    return torch.nn.functional.silu(x)
def _sigmoid(x):
    return torch.sigmoid(x)
def _layernorm(x, axis=-1, eps=1e-5):
    m = x.mean(dim=axis, keepdim=True)
    v = x.var(dim=axis, keepdim=True, unbiased=False)
    return (x - m) / torch.sqrt(v + eps)
def _scatter_add(tgt, idx, src, axis=0):
    return tgt.clone().index_add_(axis, idx, src)
def _segment_sum(src, seg, n):
    out = torch.zeros((n,) + src.shape[1:], dtype=src.dtype)
    return out.index_add_(0, seg, src)
def _pad(x, pw):
    flat = tuple(v for pair in reversed(pw) for v in pair)
    return torch.nn.functional.pad(x, flat)

kernel_name = 'parallel_sum__sliding_block_cached__glu_gated_swiglu__decode'

def setup_inputs():

    _w = (lambda a: (lambda t: t.to(torch.bfloat16) if t.is_floating_point() else t)(torch.as_tensor(a)))
    def _A_setup():
        B, Sq, D = 4, 1, 640
        Hq, Hkv, Sk, Dh = 32, 32, 8192, 192
        assert Hq % Hkv == 0, (Hq, Hkv)
        return {
            "x": _w((lambda *s: torch.randn(*s, dtype=torch.bfloat16) * 0.05)(B, Sq, D)),
            "k_cache": _w((lambda *s: torch.randn(*s, dtype=torch.bfloat16) * 1.6)(B, Hkv, Sk, Dh)),
            "v_cache": _w((lambda *s: torch.randn(*s, dtype=torch.bfloat16) * 0.8)(B, Hkv, Sk, Dh)),
            "wq": _w((lambda *s: torch.randn(*s, dtype=torch.bfloat16) * 1.6)(D, Hq * Dh) * (D ** -0.5)),
            "wo": _w((lambda *s: torch.randn(*s, dtype=torch.bfloat16) * 0.8)(Hq * Dh, D) * ((Hq * Dh) ** -0.5)),
        }
    _A_in = _A_setup()

    def _B_setup():
        B, S, D, F = 4, 1, 640, 1536
        return {
            "x": _w((lambda *s: torch.randn(*s, dtype=torch.bfloat16) * 0.05)(B, S, D)),
            "w1": _w((lambda *s: torch.randn(*s, dtype=torch.bfloat16) * 0.4)(D, F) * (2.0 / D) ** 0.5),
            "w3": _w((lambda *s: torch.randn(*s, dtype=torch.bfloat16) * 0.4)(D, F) * (2.0 / D) ** 0.5),
            "w2": _w((lambda *s: torch.randn(*s, dtype=torch.bfloat16) * 0.4)(F, D) * (2.0 / F) ** 0.5),
        }
    _B_in = _B_setup()

    return {
        "A_x": _A_in["x"],
        "A_k_cache": _A_in["k_cache"],
        "A_v_cache": _A_in["v_cache"],
        "A_wq": _A_in["wq"],
        "A_wo": _A_in["wo"],
        "B_x": _B_in["x"],
        "B_w1": _B_in["w1"],
        "B_w3": _B_in["w3"],
        "B_w2": _B_in["w2"],
    }

def reference(A_x, A_k_cache, A_v_cache, A_wq, A_wo, B_x, B_w1, B_w3, B_w2):
    def _A_ref(x, k_cache, v_cache, wq, wo):
        B, Sq, D = x.shape
        Hq, Dh = 32, 192
        Hkv, Sk = k_cache.shape[1], k_cache.shape[2]
        W = min(4096, max(256, Sk // 4))
        rep = Hq // Hkv
        q = (lambda x, *d: x.permute(*d))((x @ wq).reshape(B, Sq, Hq, Dh), 0, 2, 1, 3)
        k = (lambda x, n, axis: torch.repeat_interleave(x, n, dim=axis))(k_cache[:, :, Sk - W:, :], rep, axis=1)
        v = (lambda x, n, axis: torch.repeat_interleave(x, n, dim=axis))(v_cache[:, :, Sk - W:, :], rep, axis=1)
        scores = torch.einsum("bhqd,bhkd->bhqk", q, k) * (Dh ** -0.5)
        p = _softmax(scores, axis=-1)
        o = torch.einsum("bhqk,bhkd->bhqd", p, v)
        return (lambda x, *d: x.permute(*d))(o, 0, 2, 1, 3).reshape(B, Sq, Hq * Dh) @ wo

    def _B_ref(x, w1, w3, w2):
        gate = torch.einsum("bsd,df->bsf", x, w1)
        up = torch.einsum("bsd,df->bsf", x, w3)
        h = _silu(gate) * up
        out = torch.einsum("bsf,fd->bsd", h, w2)
        return out

    x = A_x
    xn = _layernorm(x, axis=-1)
    return x + _A_ref(xn, A_k_cache, A_v_cache, A_wq, A_wo) + _B_ref(xn, B_w1, B_w3, B_w2)
```

```python
import re

REG = re.compile(r'(?<![\w.])([vas])(\d+)(?![\w\[])|(?<![\w.])([vas])\[(\d+):(\d+)\]|\b(vcc|exec|m0|vcc_lo|vcc_hi|exec_lo|exec_hi|scc)\b')
TRANS = ("v_exp_", "v_log_", "v_rcp_", "v_rsq_", "v_sqrt_", "v_sin_", "v_cos_")

def regs_of(tok):
    out = set()
    for m in REG.finditer(tok):
        if m.group(1): out.add((m.group(1), int(m.group(2))))
        elif m.group(3):
            for i in range(int(m.group(4)), int(m.group(5)) + 1): out.add((m.group(3), i))
        else:
            n = m.group(6)
            if n.startswith("vcc"): out.add(("s", "vcc"))
            elif n.startswith("exec"): out.add(("s", "exec"))
            else: out.add(("s", n))
    return out

def split_ops(s):
    ops = []; depth = 0; cur = ""
    for ch in s:
        if ch in "[(": depth += 1
        if ch in "])": depth -= 1
        if ch == "," and depth == 0: ops.append(cur.strip()); cur = ""
        else: cur += ch
    if cur.strip(): ops.append(cur.strip())
    return ops

class Ins:
    def __init__(self, text):
        self.text = text
        t = text.split(";")[0].strip()
        parts = t.split(None, 1)
        self.mn = mn = parts[0]
        rest = parts[1] if len(parts) > 1 else ""
        ops = split_ops(rest)
        self.ops = ops
        self.mfma = mn.startswith("v_mfma")
        self.valu = mn.startswith("v_") and not self.mfma
        self.trans = mn.startswith(TRANS)
        self.dot = mn.startswith("v_dot")
        self.perml = mn.startswith("v_permlane")
        self.dpp = ("quad_perm" in rest) or ("row_" in rest and self.valu)
        self.rdlane = mn.startswith(("v_readlane", "v_readfirstlane"))
        self.vmem = mn.startswith(("buffer_", "global_"))
        self.ds = mn.startswith("ds_")
        self.salu = mn.startswith("s_")
        self.lds_dma = self.vmem and re.search(r'\blds\b', rest) is not None
        self.store = self.vmem and ("store" in mn or "atomic" in mn)
        self.wide = self.store and (mn.endswith("x3") or mn.endswith("x4"))
        R = [regs_of(o) for o in ops]
        rd = set(); wr = set()
        self.srcC = set(); self.srcAB = set(); self.data = set()
        if self.mfma:
            wr = R[0]; self.srcAB = R[1] | R[2]; self.srcC = R[3]; rd = self.srcAB | self.srcC
        elif self.valu:
            if mn.startswith("v_nop"): pass
            elif self.perml:
                wr = R[0] | R[1]; rd = R[0] | R[1]
            else:
                wr = set(R[0]); k = 1
                if re.match(r'v_(add|sub|subrev|addc|subb)_co', mn) or mn.startswith(("v_mad_u64", "v_div_scale")):
                    wr |= R[1]; k = 2
                for r in R[k:]: rd |= r
                if mn.startswith(("v_dot2c", "v_fmac", "v_writelane")) or self.dpp: rd |= R[0]
                if mn.startswith("v_cmpx"): wr.add(("s", "exec"))
                if self.dot:
                    if mn.startswith("v_dot2c"): self.srcC = set(R[0]); self.srcAB = R[1] | R[2]
                    else: self.srcC = set(R[3]); self.srcAB = R[1] | R[2]
        elif self.vmem:
            if self.lds_dma:
                for r in R: rd |= r
                rd.add(("s", "m0"))
            elif self.store:
                for r in R: rd |= r
                self.data = R[0] if mn.startswith("buffer_") else R[1]
                if "atomic" in mn and re.search(r'\bsc0\b', rest): wr = set(R[0])
            else:
                wr = R[0]
                for r in R[1:]: rd |= r
        elif self.ds:
            if mn.startswith(("ds_read", "ds_bpermute", "ds_permute", "ds_swizzle")):
                wr = R[0]
                for r in R[1:]: rd |= r
            else:
                for r in R: rd |= r
        elif self.salu:
            if mn.startswith(("s_cmp", "s_bitcmp", "s_waitcnt", "s_barrier", "s_cbranch", "s_branch", "s_nop", "s_sleep", "s_setprio", "s_endpgm")):
                for r in R: rd |= r
            else:
                if R: wr = set(R[0])
                for r in R[1:]: rd |= r
                if "saveexec" in mn: wr.add(("s", "exec"))
        self.rd = rd; self.wr = wr
        self.states = 1
        if mn == "s_nop": self.states = int(ops[0], 0) + 1
        self.passes = 0
        if self.mfma:
            self.passes = 8 if "32x32" in mn else 4

def vg(s): return {r for r in s if r[0] in "va"}
def sg(s): return {r for r in s if r[0] == "s"}

def need(p, c):
    n = 0
    def up(k):
        nonlocal n
        n = max(n, k)
    if p.valu:
        wv = vg(p.wr); ws = sg(p.wr)
        if wv & c.rd:
            if c.dpp: up(2)
            if c.mfma: up(2)
            if c.perml: up(2)
            if c.rdlane: up(1)
            if p.trans and c.valu and not c.trans: up(1)
            if p.trans and (c.mfma): up(2)
        if p.dot and (wv & (c.rd | c.wr)):
            if c.dot and c.mn.replace("_e32", "") == p.mn.replace("_e32", ""):
                if wv & c.srcAB: up(3)
            else: up(3)
        if ws & c.rd:
            if c.valu: up(4 if c.mn.startswith(("v_readlane", "v_writelane")) else 2)
            if c.vmem: up(5)
            if c.salu: up(1)
        if ("s", "exec") in ws:
            if c.dpp: up(5)
            if c.mfma or c.perml or c.rdlane: up(4)
        if ("s", "vcc") in ws and c.mn.startswith("s_cbranch_vcc"): up(2)
    if p.salu and ("s", "m0") in p.wr and c.lds_dma: up(1)
    if p.mfma:
        T = {4: (6, 8, 3), 8: (10, 12, 7)}[p.passes]
        if c.mfma:
            if p.wr & c.srcAB: up(T[1])
            if p.wr & c.srcC and not (p.wr == c.srcC and p.passes == c.passes): up(T[0])
            if p.wr & c.wr and not (p.wr & c.srcC): up(T[1])
        elif (c.valu or c.vmem or c.ds) and (p.wr & (c.rd | c.wr)): up(T[1])
        if c.valu and (p.srcC & c.wr): up(T[2])
    if p.wide and (p.data & c.wr): up(2 if c.valu else 1)
    return n

class Prog:
    def __init__(self):
        self.lines = []
        self.hist = []
        self.vm = 0
        self.vm_done = 0
        self.lg = 0; self.lg_done = 0; self.smem_pending = False
        self.ninstr = 0
    def raw(self, t): self.lines.append(t)
    def label(self, name):
        self.lines.append(name + ":")
    def I(self, text):
        c = Ins(text)
        dist = 0; req = 0
        for p in reversed(self.hist):
            k = need(p, c)
            if k - dist > req: req = k - dist
            dist += p.states
            if dist >= 24: break
        while req > 0:
            k = min(req, 16)
            nop = Ins(f"s_nop {k-1}")
            self.lines.append("    " + nop.text); self.hist.append(nop); req -= k; self.ninstr += 1
        self.lines.append("    " + text); self.hist.append(c); self.ninstr += 1
        if len(self.hist) > 64: self.hist = self.hist[-40:]
        tok = None
        if c.vmem:
            tok = ("vm", self.vm); self.vm += 1
        elif c.ds:
            tok = ("lg", self.lg); self.lg += 1
        elif c.mn.startswith(("s_load", "s_memrealtime", "s_memtime", "s_buffer_load")):
            self.smem_pending = True; tok = ("sm", 0)
        return tok
    def __call__(self, text): return self.I(text)
    def wait(self, *toks):
        v = [t[1] for t in toks if t and t[0] == "vm"]
        l = [t[1] for t in toks if t and t[0] == "lg"]
        s = [t for t in toks if t and t[0] == "sm"]
        parts = []
        if v and max(v) >= self.vm_done:
            n = self.vm - 1 - max(v)
            assert n <= 63, n
            parts.append(f"vmcnt({n})"); self.vm_done = max(v) + 1
        if (s and self.smem_pending) or (l and max(l) >= self.lg_done and self.smem_pending):
            parts.append("lgkmcnt(0)"); self.lg_done = self.lg; self.smem_pending = False
        elif l and max(l) >= self.lg_done:
            n = self.lg - 1 - max(l)
            if n > 15: n = 15;
            parts.append(f"lgkmcnt({n})"); self.lg_done = self.lg - n
        if parts: self.I("s_waitcnt " + " ".join(parts))
    def done(self, tok):
        return tok[1] < (self.vm_done if tok[0] == "vm" else self.lg_done)
    def wait_vm_outstanding(self, n):
        if self.vm - self.vm_done > n:
            self.I(f"s_waitcnt vmcnt({n})"); self.vm_done = self.vm - n
    def wait_all(self):
        self.I("s_waitcnt vmcnt(0) lgkmcnt(0)"); self.vm_done = self.vm; self.lg_done = self.lg; self.smem_pending = False
    def wait_lg_all(self):
        if self.lg_done < self.lg or self.smem_pending:
            self.I("s_waitcnt lgkmcnt(0)"); self.lg_done = self.lg; self.smem_pending = False
    def text(self): return "\n".join(self.lines) + "\n"
```

```python
import sys
from dsl import Prog
KN = "parallel_sum__sliding_block_cached__glu_gated_swiglu__decode_kernel"
HDR = open("parallel_sum__sliding_block_cached__glu_gated_swiglu__decode.s.ref").read().split("; Override launch")[0]

EP_STRIDE = 4608; EP_ROW = 1152
ML_OFF = 0x120000; Y_OFF = 0x130000; WS_SIZE = 0x1D0000
WAVE_LDS = 31744; STAGE = 10240; SCR = 30720; OX = 4 * WAVE_LDS; OXS = 416
LDS_TOTAL = 131072
LOG2E = 0x3FB8AA3B
SCALE = 0x3D93CD3A
DPPM = "row_mask:0xf bank_mask:0xf"

def gen(D=6, D_early=12, inter=True, stamps=False, pre_k=6, poll_pos=27, dma_start=12, dma_end=174, ml_pos=168,
        kvflag="nt", wflag="nt", spin=1 << 17, dbgdump=False):
    p = Prog()
    I = p.I
    p.raw(HDR.rstrip())
    p.raw(f"; @launch grid=(256,1,1) block=(256,1,1) lds={LDS_TOTAL}")
    p.raw('.amdgcn_target "amdgcn-amd-amdhsa--gfx950"')
    p.raw(".text"); p.raw(f".globl {KN}"); p.raw(".p2align 8"); p.raw(f".type {KN},@function"); p.label(KN)
    sK, sV, sWo, sW2, sX, sWs, sEF, sEH, sDbg, sOut, sWsH = [f"s[{a}:{a+3}]" for a in range(28, 72, 4)]
    W, XG, HL, JJ, B, S, H, LID = "s72", "s73", "s74", "s75", "s76", "s77", "s78", "s79"
    KVO, T0, T1, T2, T3, LDSB, SF, SH, NEG, CNT = "s80", "s81", "s82", "s83", "s84", "s85", "s86", "s87", "s88", "s89"
    WOB, W2B, YROW, MLO, HWID = "s90", "s91", "s92", "s93", "s3"
    def stamp(k):
        if stamps: I(f"s_memrealtime s[{4+2*k}:{5+2*k}]")
    I("s_cmp_ge_u32 s2, 256"); I("s_cbranch_scc1 L_end")
    if stamps: I("s_memrealtime s[94:95]")
    I("s_load_dwordx16 s[4:19], s[0:1], 0")
    tk = I("s_load_dwordx8 s[20:27], s[0:1], 64")
    I("v_lshrrev_b32 v8, 6, v0"); I("v_and_b32 v0, 63, v0"); I(f"v_readfirstlane_b32 {W}, v8")
    I(f"s_and_b32 {XG}, s2, 7"); I(f"s_lshr_b32 {T0}, s2, 3")
    I(f"s_lshr_b32 {HL}, {T0}, 3"); I(f"s_and_b32 {JJ}, {T0}, 7")
    I(f"s_lshr_b32 {B}, {JJ}, 1"); I(f"s_and_b32 {S}, {JJ}, 1")
    I(f"s_lshl_b32 {H}, {XG}, 2"); I(f"s_add_u32 {H}, {H}, {HL}")
    I(f"s_lshl_b32 {LID}, {XG}, 5"); I(f"s_add_u32 {LID}, {LID}, {T0}")
    I(f"s_lshl_b32 {T0}, {B}, 5"); I(f"s_add_u32 {T0}, {T0}, {H}")
    I(f"s_lshl_b32 {MLO}, {T0}, 7"); I(f"s_add_u32 {MLO}, {MLO}, {ML_OFF}")
    I(f"s_lshl_b32 {T0}, {T0}, 13"); I(f"s_add_u32 {T0}, {T0}, 6144")
    I(f"s_lshl_b32 {T1}, {S}, 10"); I(f"s_add_u32 {T0}, {T0}, {T1}")
    I(f"s_mul_i32 {KVO}, {T0}, 384")
    I(f"s_mul_i32 {T1}, {W}, {3072 if inter else 98304}"); I(f"s_add_u32 {KVO}, {KVO}, {T1}")
    BLK = 12288 if inter else 3072
    I(f"s_mul_i32 {LDSB}, {W}, {WAVE_LDS}")
    I(f"s_mul_i32 {SF}, {W}, 320"); I(f"s_and_b32 {T0}, {W}, 1"); I(f"s_lshl_b32 {T1}, {T0}, 6")
    I(f"s_xor_b32 {T0}, {T0}, 1"); I(f"s_lshl_b32 {T0}, {T0}, 8")
    I(f"s_add_u32 {SH}, {SF}, {T0}"); I(f"s_add_u32 {SF}, {SF}, {T1}")
    I(f"s_mul_i32 {WOB}, {H}, {192*1280}")
    I(f"s_lshl_b32 {T0}, {H}, 1"); I(f"s_add_u32 {T0}, {T0}, {S}")
    I(f"s_mul_i32 {W2B}, {T0}, {24*1280}")
    I(f"s_lshl_b32 {T1}, {B}, 6"); I(f"s_add_u32 {T0}, {T0}, {T1}")
    I(f"s_mul_i32 {YROW}, {T0}, 2560"); I(f"s_add_u32 {YROW}, {YROW}, {Y_OFF}")
    I("v_lshrrev_b32 v8, 3, v0")
    I("v_and_b32 v9, 7, v0"); I("v_lshlrev_b32 v9, 4, v9")
    I("v_lshrrev_b32 v10, 2, v0")
    I("v_and_b32 v11, 3, v0")
    I("v_lshrrev_b32 v12, 4, v0")
    I("v_mul_u32_u24 v1, 384, v8"); I("v_add_u32 v1, v1, v9")
    I("v_mul_u32_u24 v2, 1280, v8"); I("v_add_u32 v2, v2, v9")
    I("v_lshlrev_b32 v13, 4, v11")
    I("v_mul_u32_u24 v3, 1280, v10"); I("v_add_u32 v3, v3, v13")
    I("v_mul_u32_u24 v15, 1280, v11"); I("v_mul_u32_u24 v14, 80, v10"); I("v_add_u32 v14, v14, v15")
    I("v_lshl_add_u32 v15, v12, 3, v15")
    I("v_mul_u32_u24 v17, 3072, v10"); I("v_add_u32 v17, v17, v13")
    I(f"s_cmp_eq_u32 {W}, 3")
    I(f"s_cselect_b32 {T2}, 1, 4"); I(f"s_mul_i32 {T2}, {T2}, 3072")
    I(f"v_mul_u32_u24 v16, {T2}, v8"); I("v_add_u32 v16, v16, v9")
    p.wait(tk)
    def srd(name, lo, size):
        a = int(name[2:name.index(":")])
        I(f"s_mov_b32 s{a}, s{lo}"); I(f"s_mov_b32 s{a+1}, s{lo+1}"); I(f"s_mov_b32 s{a+2}, {size}"); I(f"s_mov_b32 s{a+3}, 0x20000")
    srd(sX, 4, 5120)
    XS, XO, EA, ED = 160, 180, 190, 32
    tx = [I(f"buffer_load_dwordx4 v[{XS+4*i}:{XS+4*i+3}], v14, {sX}, 0 offen offset:{16*i} nt") for i in range(5)]
    I(f"s_mul_i32 {T0}, {JJ}, 160")
    txo = [I(f"buffer_load_dwordx2 v[{XO+2*i}:{XO+2*i+1}], v15, {sX}, {T0} offen offset:{32*i} nt") for i in range(5)]
    I(f"s_cmp_ge_u32 {HL}, 2")
    I("s_cselect_b32 s56, s18, s16"); I("s_cselect_b32 s57, s19, s17"); I("s_mov_b32 s59, 0x20000")
    I(f"s_cmp_eq_u32 {W}, 3")
    I("s_cselect_b32 s52, s56, s10"); I("s_cselect_b32 s53, s57, s11")
    I("s_mov_b32 s54, 7864320"); I("s_cselect_b32 s54, 1966080, s54"); I("s_mov_b32 s55, 0x20000")
    I("s_cselect_b32 s58, 1966080, 0")
    I(f"s_cselect_b32 s70, {WS_SIZE}, 0")
    I(f"s_mul_i32 {T0}, {H}, 384"); I(f"s_lshl_b32 {T1}, {W}, 7"); I(f"s_add_u32 {T0}, {T0}, {T1}")
    I(f"s_mul_i32 {T1}, {XG}, 384"); I(f"s_and_b32 {T3}, {HL}, 1"); I(f"s_lshl_b32 {NEG}, {T3}, 8"); I(f"s_add_u32 {NEG}, {NEG}, {T1}")
    I(f"s_cmp_eq_u32 {W}, 3"); I(f"s_cselect_b32 {T0}, {NEG}, {T0}")
    I(f"s_mul_i32 {NEG}, {JJ}, 80"); I(f"s_mul_i32 {CNT}, {NEG}, {T2}"); I(f"s_add_u32 {T0}, {T0}, {CNT}")
    I(f"s_lshl_b32 {T2}, {T2}, 3")
    tw = []
    for t in range(10):
        I(f"s_add_u32 m0, {LDSB}, {t*1024}")
        tw.append(I(f"buffer_load_dwordx4 v16, {sEF}, {T0} offen {wflag} lds"))
        if t < 9: I(f"s_add_u32 {T0}, {T0}, {T2}")
    I(f"s_mul_i32 {T0}, {NEG}, 3072"); I(f"s_add_u32 {T0}, {T0}, {T1}"); I(f"s_lshl_b32 {T2}, {T3}, 6")
    I(f"s_add_u32 {T0}, {T0}, {T2}"); I(f"s_add_u32 {T0}, {T0}, 128")
    for t in range(5):
        I(f"s_add_u32 m0, {LDSB}, {10240+t*1024}")
        tw.append(I(f"buffer_load_dwordx4 v17, {sEH}, {T0} offen {wflag} lds"))
        if t < 4: I(f"s_add_u32 {T0}, {T0}, {16*3072}")
    srd(sK, 6, 402653184)
    RING = 64
    def slot(n): return (n % 16) if n < 32 else ((n - 32) % 8)
    kv = [("kv", n, j) for n in range(64) for j in range(3)]
    dmas = []
    ksteps = [("wo", 0), ("wo", 1), ("wo", 2), ("w2", 0), ("wo", 3), ("wo", 4), ("wo", 5)]
    for si, ks in enumerate(ksteps):
        for o in range(4):
            for f in range(2): dmas.append(("dma", si, "F", o, f))
            if o % 2 == 1: dmas.append(("dma", si, "H", o // 2, 0))
    stream = []; di = 0
    for i, it in enumerate(kv):
        stream.append(it)
        if i >= dma_start:
            want = min(len(dmas), int((i - dma_start + 1) * len(dmas) / (dma_end - dma_start) + 1e-9))
            while di < want: stream.append(dmas[di]); di += 1
    assert di == len(dmas)
    tok = {}
    stoks = []
    def issue(it):
        if it[0] == "kv":
            _, n, j = it
            r = RING + slot(n) * 12 + j * 4
            if j == 0: I(f"s_add_u32 {T3}, {KVO}, {(n % 32) * BLK}")
            t = I(f"buffer_load_dwordx4 v[{r}:{r+3}], v1, {sK if n < 32 else sV}, {T3} offen offset:{128*j} {kvflag}")
        else:
            _, si, part, o, f = it
            kind, t_ = ksteps[si]
            base = WOB if kind == "wo" else W2B
            st = (si % 3) * STAGE
            if part == "F":
                I(f"s_add_u32 {T0}, {base}, {SF}"); I(f"s_add_u32 {T0}, {T0}, {(t_*32 + 8*o)*1280 + 128*f}")
                I(f"s_add_u32 m0, {LDSB}, {st + f*4096 + o*1024}")
                t = I(f"buffer_load_dwordx4 v2, {sWo if kind == 'wo' else sW2}, {T0} offen {wflag} lds")
            else:
                I(f"s_add_u32 {T0}, {base}, {SH}"); I(f"s_add_u32 {T0}, {T0}, {(t_*32 + 16*o)*1280}")
                I(f"s_add_u32 m0, {LDSB}, {st + 8192 + o*1024}")
                t = I(f"buffer_load_dwordx4 v3, {sWo if kind == 'wo' else sW2}, {T0} offen {wflag} lds")
        tok[it] = t; stoks.append(t)
    pos = 0
    for _ in range(pre_k): issue(stream[pos]); pos += 1
    srd(sV, 8, 402653184); srd(sWo, 12, 7864320); srd(sW2, 20, 1966080)
    srd(sWs, 26, WS_SIZE); srd(sDbg, 24, 256); srd(sOut, 22, 5120)
    I("s_mov_b32 s68, s26"); I("s_mov_b32 s69, s27"); I("s_mov_b32 s71, 0x20000")
    for r in range(8, 12): I(f"v_mov_b32 v{r+48}, -1")
    I("v_lshlrev_b32 v18, 4, v0")
    I(f"s_mul_i32 {T0}, {W}, 640"); I(f"s_add_u32 {T0}, {T0}, {YROW}")
    I("s_mov_b32 exec_hi, 0xff")
    tc1 = I(f"buffer_store_dwordx4 v[56:59], v18, {sWs}, {T0} offen sc1")
    I(f"s_lshl_b32 {T0}, {S}, 2"); I(f"s_add_u32 {T0}, {T0}, {W}"); I(f"s_lshl_b32 {T0}, {T0}, 3")
    I(f"s_add_u32 {NEG}, {T0}, {MLO}")
    MLS = NEG
    I("s_mov_b64 exec, 1")
    tc2 = I(f"buffer_store_dwordx2 v[56:57], v18, {sWs}, {MLS} offen sc1")
    I("s_mov_b64 exec, -1")
    I("v_and_b32 v13, 3, v10"); I("v_lshl_add_u32 v13, v12, 3, v13")
    I("v_lshlrev_b32 v19, 3, v11"); I(f"v_add_u32 v19, {LDSB}, v19")
    I("v_lshl_add_u32 v4, v13, 7, v19"); I("v_lshl_add_u32 v5, v13, 6, v19")
    I("v_lshl_add_u32 v16, v10, 7, v19"); I("v_lshl_add_u32 v17, v10, 6, v19")
    I(f"s_lshl_b32 {T0}, {XG}, 5"); I(f"s_lshl_b32 {T1}, {HL}, 3"); I(f"s_add_u32 {T1}, {T1}, {T0}")
    I(f"s_mul_i32 {T1}, {T1}, {EP_STRIDE}"); I(f"s_mul_i32 {T2}, {B}, {EP_ROW}"); I(f"s_add_u32 {T1}, {T1}, {T2}")
    I(f"s_lshr_b32 {CNT}, {HL}, 1"); I(f"s_lshl_b32 {CNT}, {CNT}, 3"); I(f"s_add_u32 {T0}, {T0}, {CNT}")
    I(f"s_mul_i32 {T0}, {T0}, {EP_STRIDE}"); I(f"s_add_u32 {T0}, {T0}, {T2}")
    I(f"s_and_b32 {CNT}, {HL}, 1"); I(f"s_mul_i32 {CNT}, {CNT}, 192"); I(f"s_add_u32 {T0}, {T0}, {CNT}")
    I(f"s_mul_i32 {CNT}, {S}, 96"); I(f"s_add_u32 {T0}, {T0}, {CNT}")
    I(f"s_add_u32 {T2}, {T0}, {16*EP_STRIDE - 96}")
    I(f"v_mov_b32 v6, {T2}"); I(f"v_mov_b32 v13, {T0}"); I("v_cmp_gt_u32 vcc, 54, v0"); I("v_cndmask_b32 v6, v6, v13, vcc")
    I(f"v_mov_b32 v13, {T1}"); I("v_cmp_gt_u32 vcc, 48, v0"); I("v_cndmask_b32 v6, v6, v13, vcc")
    I("v_add_u32 v6, v6, v18")
    I("v_and_b32 v13, 3, v10"); I("v_mul_u32_u24 v60, 1152, v11"); I("v_lshl_add_u32 v60, v13, 6, v60"); I("v_lshl_add_u32 v60, v12, 4, v60")
    I("v_mov_b32 v61, 0x7fffffff"); I("v_cmp_gt_u32 vcc, 2, v13"); I("v_cndmask_b32 v61, v61, v60, vcc")
    I("v_cmp_eq_u32 s[96:97], 1, v13"); I("v_cmp_eq_u32 s[98:99], 2, v13"); I("v_cmp_eq_u32 s[100:101], 3, v13")
    def allred(op, r, t, strides):
        for st_ in strides:
            if st_ in (1, 2): I(f"{op}_dpp v{r}, v{r}, v{r} quad_perm:{'[1,0,3,2]' if st_ == 1 else '[2,3,0,1]'} {DPPM}")
            elif st_ == "hm": I(f"{op}_dpp v{r}, v{r}, v{r} row_half_mirror {DPPM}")
            elif st_ in (4, 8): I(f"{op}_dpp v{r}, v{r}, v{r} row_ror:{st_} {DPPM}")
            else:
                I(f"v_mov_b32 v{t}, v{r}"); I(f"v_permlane{st_}_swap_b32 v{r}, v{t}"); I(f"{op} v{r}, v{r}, v{t}")
    p.wait(*tx)
    I("v_mov_b32 v8, 0"); I("v_mov_b32 v9, 0"); I("v_mov_b32 v13, 0x3f803f80")
    for i in range(20): I(f"v_dot2c_f32_bf16 v{8 + (i & 1)}, v{XS+i}, v13")
    I("v_add_f32 v8, v8, v9")
    allred("v_add_f32", 8, 9, [8, 4, 16, 32])
    I("v_mul_f32 v8, 0x3acccccd, v8")
    I("v_mov_b32 v9, 0"); I("v_mov_b32 v10, 0")
    for i in range(20):
        I(f"v_lshlrev_b32 v11, 16, v{XS+i}"); I(f"v_and_b32 v12, 0xffff0000, v{XS+i}")
        I("v_sub_f32 v11, v11, v8"); I("v_sub_f32 v12, v12, v8")
        I("v_fmac_f32 v9, v11, v11"); I("v_fmac_f32 v10, v12, v12")
    I("v_add_f32 v9, v9, v10")
    allred("v_add_f32", 9, 10, [8, 4, 16, 32])
    I("v_mul_f32 v9, 0x3acccccd, v9")
    I("v_cvt_pk_bf16_f32 v10, v8, v9")
    I("v_lshlrev_b32 v8, 16, v10")
    I("v_and_b32 v9, 0xffff0000, v10")
    I("v_add_f32 v9, 0x3727c5ac, v9")
    I("v_cvt_pk_bf16_f32 v9, v9, v9"); I("v_lshlrev_b32 v9, 16, v9")
    I("v_sqrt_f32 v9, v9")
    I("v_cvt_pk_bf16_f32 v9, v9, v9"); I("v_lshlrev_b32 v9, 16, v9")
    I("v_rcp_f32 v9, v9")
    p.wait(*txo)
    for i in range(10):
        r = XO + i
        I(f"v_lshlrev_b32 v11, 16, v{r}"); I(f"v_and_b32 v12, 0xffff0000, v{r}")
        I("v_sub_f32 v11, v11, v8"); I("v_sub_f32 v12, v12, v8")
        I("v_cvt_pk_bf16_f32 v13, v11, v12")
        I("v_lshlrev_b32 v11, 16, v13"); I("v_and_b32 v12, 0xffff0000, v13")
        I("v_mul_f32 v11, v11, v9"); I("v_mul_f32 v12, v12, v9")
        I(f"v_cvt_pk_bf16_f32 v{r}, v11, v12")
    for _ in range(3): issue(stream[pos]); pos += 1
    p.wait(*tw)
    stamp(2)
    ta = {}
    for t in range(5):
        for c in range(6):
            r = EA + (t * 6 + c) * 2
            if c < 4: ta[t, c] = I(f"ds_read_b64_tr_b16 v[{r}:{r+1}], v16 offset:{t*2048 + c*32}")
            else: ta[t, c] = I(f"ds_read_b64_tr_b16 v[{r}:{r+1}], v17 offset:{10240 + t*1024 + (c-4)*32}")
    for t in range(5):
        for c in range(6):
            r = EA + (t * 6 + c) * 2; d = ED + 4 * c
            p.wait(ta[t, c])
            I(f"v_mfma_f32_16x16x16_bf16 v[{d}:{d+3}], v[{r}:{r+1}], v[{XO+2*t}:{XO+2*t+1}], {'0' if t == 0 else f'v[{d}:{d+3}]'}")
    for r in range(4):
        I(f"v_cndmask_b32 v{ED+r}, v{ED+r}, v{ED+4+r}, s[96:97]")
        I(f"v_cndmask_b32 v{ED+16+r}, v{ED+16+r}, v{ED+20+r}, s[96:97]")
    for r in range(4): I(f"v_cndmask_b32 v{ED+r}, v{ED+r}, v{ED+8+r}, s[98:99]")
    for r in range(4): I(f"v_cndmask_b32 v{ED+r}, v{ED+r}, v{ED+12+r}, s[100:101]")
    I(f"s_mul_i32 {T0}, {LID}, {EP_STRIDE}")
    I(f"s_and_b32 {T1}, {HL}, 1"); I(f"s_lshl_b32 {T2}, {T1}, 7"); I(f"s_cmp_eq_u32 {W}, 3"); I(f"s_cselect_b32 {T2}, {T2}, 0")
    I(f"s_lshl_b32 {CNT}, {W}, 8"); I(f"s_add_u32 {T2}, {T2}, {CNT}"); I(f"s_add_u32 {T2}, {T2}, {T0}")
    te1 = I(f"buffer_store_dwordx4 v[{ED}:{ED+3}], v60, {sWs}, {T2} offen sc1")
    I(f"s_xor_b32 {T1}, {T1}, 1"); I(f"s_lshl_b32 {T1}, {T1}, 8"); I(f"s_add_u32 {T1}, {T1}, {T0}"); I(f"s_add_u32 {T1}, {T1}, 768")
    te2 = I(f"buffer_store_dwordx4 v[{ED+16}:{ED+19}], v61, {sWsH}, {T1} offen sc1")
    early_end_pos = pos

    Q = 20; SC = 32; M = 7
    PV = 160; YA = 172; OA = 212; XT = 236
    state = dict(flag=False, polled=None, ep=None, q=False, kp=0, soft=False, vb=0, tr=0, ffn=False, ml=None, f=False)
    fallbacks = []

    def do_flag():
        p.wait(tc1, tc2, te1, te2)
        I("s_barrier")
        I(f"s_cmp_lg_u32 {W}, 0"); I("s_cbranch_scc1 L_noflag")
        I("s_mov_b64 exec, 1"); I("v_mov_b32 v8, 1"); I("v_mov_b32 v9, 0")
        p.lines.append(f"    buffer_store_byte v8, v9, {sDbg}, s2 offen sc1")
        I("s_mov_b64 exec, -1")
        p.label("L_noflag")
        stamp(3)
        state["flag"] = True
    def do_poll_issue():
        I("v_lshlrev_b32 v18, 2, v0")
        state["polled"] = I(f"buffer_load_dword v19, v18, {sDbg}, 0 offen sc1")
    def do_poll_check():
        p.wait(state["polled"])
        I("v_cmp_ne_u32 vcc, 0x01010101, v19"); I("s_cbranch_vccnz L_fb_flag"); p.label("L_fb_flag_ret")
        fallbacks.append(("L_fb_flag", [f"buffer_load_dword v19, v18, {sDbg}, 0 offen sc1", "s_waitcnt vmcnt(0)", "v_cmp_ne_u32 vcc, 0x01010101, v19"]))
        e = []
        for r in range(8):
            I(f"s_mov_b32 {T0}, {r*EP_STRIDE}")
            e.append(I(f"buffer_load_dwordx4 v[{SC+4*r}:{SC+4*r+3}], v6, {sWs}, {T0} offen sc1"))
        state["ep"] = e
    def do_q():
        p.wait(*state["ep"])
        for (a, b_) in [(0, 1), (2, 3), (4, 5), (6, 7), (0, 2), (4, 6), (0, 4)]:
            for r in range(4): I(f"v_add_f32 v{SC+4*a+r}, v{SC+4*a+r}, v{SC+4*b_+r}")
        I(f"v_cvt_pk_bf16_f32 v8, v{SC}, v{SC+1}"); I(f"v_cvt_pk_bf16_f32 v9, v{SC+2}, v{SC+3}")
        I(f"v_lshlrev_b32 v10, 3, v0"); I(f"v_add_u32 v10, {LDSB}, v10")
        w_ = I(f"ds_write_b64 v10, v[8:9] offset:{SCR}")
        I("v_and_b32 v11, 7, v0"); I("v_lshlrev_b32 v11, 4, v11"); I(f"v_add_u32 v11, {LDSB}, v11")
        p.wait(w_)
        rs = [I(f"ds_read_b128 v[{Q+4*j}:{Q+4*j+3}], v11 offset:{SCR + 128*j}") for j in range(3)]
        I(f"v_mov_b32 v{M}, 0xff800000")
        p.wait(*rs)
        stamp(4)
        state["q"] = True
    def kpair_toks(k): return [tok.get(("kv", n, j)) for n in (2*k, 2*k+1) for j in range(3)]
    def do_kpair():
        k = state["kp"]; n0 = 2 * k
        p.wait(*kpair_toks(k))
        r0 = RING + slot(n0) * 12; r1 = RING + slot(n0 + 1) * 12
        I("v_mov_b32 v8, 0"); I("v_mov_b32 v9, 0")
        for i in range(12):
            I(f"v_dot2c_f32_bf16 v8, v{r0+i}, v{Q+i}"); I(f"v_dot2c_f32_bf16 v9, v{r1+i}, v{Q+i}")
        for d_ in ("quad_perm:[1,0,3,2]", "quad_perm:[2,3,0,1]", "row_half_mirror"):
            I(f"v_add_f32_dpp v8, v8, v8 {d_} {DPPM}"); I(f"v_add_f32_dpp v9, v9, v9 {d_} {DPPM}")
        I("v_cvt_pk_bf16_f32 v10, v8, v9")
        I("v_lshlrev_b32 v8, 16, v10"); I("v_and_b32 v9, 0xffff0000, v10")
        I(f"v_mul_f32 v8, {SCALE:#x}, v8"); I(f"v_mul_f32 v9, {SCALE:#x}, v9")
        I("v_cvt_pk_bf16_f32 v10, v8, v9")
        I(f"v_lshlrev_b32 v{SC+n0}, 16, v10"); I(f"v_and_b32 v{SC+n0+1}, 0xffff0000, v10")
        I(f"v_max3_f32 v{M}, v{M}, v{SC+n0}, v{SC+n0+1}")
        state["kp"] += 1
    def do_soft():
        allred("v_max_f32", M, 8, [8, 16, 32])
        I(f"s_mov_b32 {T0}, {LOG2E:#x}")
        I(f"v_mul_f32 v8, {T0}, v{M}")
        I("v_mov_b32 v9, 0"); I("v_mov_b32 v10, 0")
        for n in range(32): I(f"v_fma_f32 v{SC+n}, v{SC+n}, {T0}, -v8")
        for n in range(32): I(f"v_exp_f32 v{SC+n}, v{SC+n}")
        for n in range(32): I(f"v_add_f32 v{9 + (n & 1)}, v{9 + (n & 1)}, v{SC+n}")
        I("v_add_f32 v9, v9, v10")
        allred("v_add_f32", 9, 10, [8, 16, 32])
        I("v_min_u32 v8, 0xfffffffe, v8"); I("v_min_u32 v9, 0xfffffffe, v9")
        I("v_mov_b32 v10, 0")
        I("s_mov_b64 exec, 1")
        I(f"buffer_store_dwordx2 v[8:9], v10, {sWs}, {MLS} offen sc1")
        I("s_mov_b64 exec, -1")
        I(f"v_mov_b32 v{M}, v8")
        for n in range(32): I(f"v_cvt_pk_bf16_f32 v{SC+n}, v{SC+n}, v{SC+n}")
        I("v_and_b32 v10, 1, v0"); I("v_mov_b32 v11, 0xffff"); I("v_lshlrev_b32 v10, 4, v10"); I("v_lshlrev_b32 v11, v10, v11")
        I("v_bfe_u32 v10, v0, 1, 2")
        for r in range(4):
            I(f"v_cmp_eq_u32 vcc, {r}, v10"); I(f"v_cndmask_b32 v{20+r}, 0, v11, vcc")
        stamp(5)
        state["soft"] = True
    def vb_toks(k): return [tok.get(("kv", 32 + k, j)) for j in range(3)]
    def do_vb():
        k = state["vb"]; bd = 24 + 4 * (k & 1)
        for r in range(4): I(f"v_and_b32 v{bd+r}, v{20+r}, v{SC+k}")
        r0 = RING + slot(32 + k) * 12
        for j in range(3):
            p.wait(tok["kv", 32 + k, j])
            d = PV + 4 * j
            I(f"v_mfma_f32_16x16x32_bf16 v[{d}:{d+3}], v[{bd}:{bd+3}], v[{r0+4*j}:{r0+4*j+3}], {'0' if k == 0 else f'v[{d}:{d+3}]'}")
        state["vb"] += 1
    def tr_toks(si): return [tok.get(d_) for d_ in dmas if d_[1] == si]
    def tr_addr(si, c, u):
        st = (si % 3) * STAGE
        if c < 8: return "v4", st + (c >> 2) * 4096 + u * 512 + (c & 3) * 32
        return "v5", st + 8192 + u * 256 + (c - 8) * 32
    def do_tr():
        si = state["tr"]; kind, t_ = ksteps[si]
        p.wait(*tr_toks(si))
        if kind == "wo":
            ts = []
            for c in range(10):
                for u in range(2):
                    a = (t_ * 10 + c) * 4 + 2 * u; v_, off = tr_addr(si, c, u)
                    ts.append(I(f"ds_read_b64_tr_b16 a[{a}:{a+1}], {v_} offset:{off}"))
            p.wait(*ts)
        else:
            I("v_lshrrev_b32 v8, 4, v0"); I("v_lshlrev_b32 v9, 4, v8"); I(f"v_add_u32 v9, {LDSB}, v9")
            g_ = I(f"ds_read_b128 v[{XT}:{XT+3}], v9 offset:{SCR+384}")
            u_ = I(f"ds_read_b128 v[{XT+4}:{XT+7}], v9 offset:{SCR+432}")
            I("v_and_b32 v9, 7, v0"); I("v_cmp_eq_u32 vcc, 0, v9"); I("v_cmp_gt_u32 s[96:97], 3, v8"); I("s_and_b64 s[96:97], s[96:97], vcc")
            p.wait(g_, u_)
            I(f"s_mov_b32 {T0}, {LOG2E | 0x80000000:#x}")
            for r in range(4):
                I(f"v_lshlrev_b32 v8, 16, v{XT+r}"); I(f"v_and_b32 v9, 0xffff0000, v{XT+r}")
                I(f"v_mul_f32 v10, {T0}, v8"); I(f"v_mul_f32 v11, {T0}, v9")
                I("v_exp_f32 v10, v10"); I("v_exp_f32 v11, v11")
                I("v_add_f32 v10, 1.0, v10"); I("v_add_f32 v11, 1.0, v11")
                I("v_rcp_f32 v10, v10"); I("v_rcp_f32 v11, v11")
                I("v_mul_f32 v8, v8, v10"); I("v_mul_f32 v9, v9, v11")
                I("v_cvt_pk_bf16_f32 v10, v8, v9")
                I("v_lshlrev_b32 v8, 16, v10"); I("v_and_b32 v9, 0xffff0000, v10")
                I(f"v_lshlrev_b32 v10, 16, v{XT+4+r}"); I(f"v_and_b32 v11, 0xffff0000, v{XT+4+r}")
                I("v_mul_f32 v8, v8, v10"); I("v_mul_f32 v9, v9, v11")
                I("v_cvt_pk_bf16_f32 v10, v8, v9")
                I(f"v_cndmask_b32 v{OA+r}, 0, v10, s[96:97]")
            for half in range(2):
                ts = {}
                for cc in range(5):
                    c = half * 5 + cc
                    for u in range(2):
                        r = OA + 4 + cc * 4 + 2 * u; v_, off = tr_addr(si, c, u)
                        ts[cc, u] = I(f"ds_read_b64_tr_b16 v[{r}:{r+1}], {v_} offset:{off}")
                for cc in range(5):
                    c = half * 5 + cc; r = OA + 4 + cc * 4; d = YA + 4 * c
                    p.wait(ts[cc, 0], ts[cc, 1])
                    I(f"v_mfma_f32_16x16x32_bf16 v[{d}:{d+3}], v[{OA}:{OA+3}], v[{r}:{r+3}], 0")
                I("s_nop 7")
            state["ffn"] = True
        state["tr"] += 1
    FV = XT + 8
    def do_ml_issue():
        I(f"v_and_b32 v{XT+10}, 7, v0"); I(f"v_lshlrev_b32 v{XT+10}, 3, v{XT+10}")
        state["ml"] = I(f"buffer_load_dwordx2 v[{XT+12}:{XT+13}], v{XT+10}, {sWs}, {MLO} offen sc1")
        I(f"s_lshl_b32 {T0}, s2, 6")
        state["xc"] = I(f"buffer_load_dwordx2 v[{XT+14}:{XT+15}], v{XT+10}, {sX}, {T0} offen nt")
    def do_ml_check():
        p.wait(state["ml"], state["xc"])
        chk = [f"v_max_u32 v8, v{XT+12}, v{XT+13}", "v_cmp_eq_u32 vcc, -1, v8"]
        for c_ in chk: I(c_)
        I("s_cbranch_vccnz L_fb_ml"); p.label("L_fb_ml_ret")
        fallbacks.append(("L_fb_ml", [f"buffer_load_dwordx2 v[{XT+12}:{XT+13}], v{XT+10}, {sWs}, {MLO} offen sc1", "s_waitcnt vmcnt(0)"] + chk))
        I(f"v_mov_b32 v8, v{XT+12}")
        allred("v_max_f32", 8, 9, [1, 2, "hm"])
        I(f"v_sub_f32 v9, v{XT+12}, v8"); I(f"v_sub_f32 v10, v{M}, v8")
        I("v_exp_f32 v9, v9"); I("v_exp_f32 v10, v10")
        I(f"v_mul_f32 v9, v9, v{XT+13}")
        allred("v_add_f32", 9, 11, [1, 2, "hm"])
        I("v_rcp_f32 v9, v9")
        I(f"v_mul_f32 v{FV}, v10, v9")
        I("v_bfe_u32 v8, v0, 3, 1"); I(f"s_lshl_b32 {T0}, {W}, 1"); I(f"v_add_u32 v8, {T0}, v8"); I(f"v_mul_u32_u24 v8, {OXS}, v8")
        I("v_and_b32 v9, 7, v0"); I("v_lshl_add_u32 v8, v9, 4, v8"); I("v_bfe_u32 v10, v0, 4, 1"); I("v_lshl_add_u32 v8, v10, 3, v8")
        I(f"v_add_u32 v{XT+16}, {OX}, v8")
        I(f"v_mul_u32_u24 v8, {OXS}, v9"); I("v_lshrrev_b32 v10, 4, v0"); I("v_lshl_add_u32 v8, v10, 4, v8"); I(f"v_add_u32 v{XT+17}, {OX}, v8")
        I(f"v_lshlrev_b32 v{XT+18}, 2, v0")
        state["f"] = True

    def known(ts): return all(t is not None and p.done(t) for t in ts)
    def issued(ts): return all(t is not None for t in ts)
    def run_ready(kvpos, budget):
        n = 0
        while n < budget:
            if not state["flag"] and known([tc1, tc2, te1, te2]): do_flag()
            elif state["flag"] and state["polled"] is None and kvpos >= poll_pos: do_poll_issue()
            elif state["polled"] is not None and state["ep"] is None and known([state["polled"]]): do_poll_check()
            elif state["ep"] is not None and not state["q"] and known(state["ep"]): do_q()
            elif state["q"] and state["kp"] < 16 and known(kpair_toks(state["kp"])): do_kpair()
            elif state["kp"] == 16 and not state["soft"]: do_soft()
            elif state["soft"] and state["vb"] < 32 and known(vb_toks(state["vb"])): do_vb()
            elif state["tr"] < 7 and known(tr_toks(state["tr"])) and (ksteps[state["tr"]][0] == "wo" or state["soft"]): do_tr()
            elif state["soft"] and state["ffn"] and state["ml"] is None and kvpos >= ml_pos: do_ml_issue()
            elif state["ml"] is not None and not state["f"] and known([state["ml"], state["xc"]]): do_ml_check()
            else: break
            n += 1
    def force_q():
        if not state["flag"]: do_flag()
        if state["polled"] is None: do_poll_issue()
        if state["ep"] is None: do_poll_check()
        if not state["q"]: do_q()
    def force_proc(n):
        if n < 32:
            force_q()
            while state["kp"] * 2 <= n: do_kpair()
        else:
            force_proc(31)
            if not state["soft"]: do_soft()
            while state["vb"] <= n - 32: do_vb()
    kvpos = sum(1 for it in stream[:pos] if it[0] == "kv")
    while pos < len(stream):
        it = stream[pos]
        if it[0] == "kv":
            n = it[1]
            prev = [m for m in range(n) if slot(m) == slot(n)]
            if prev: force_proc(prev[-1])
        else:
            si = it[1]
            while state["tr"] <= si - 3:
                if ksteps[state["tr"]][0] == "w2": force_proc(31); (state["soft"] or do_soft())
                do_tr()
        d_ = D if state["flag"] else D_early
        if pos - d_ >= 0: p.wait(stoks[pos - d_])
        issue(it); pos += 1
        if it[0] == "kv": kvpos += 1
        run_ready(kvpos, 1)
    while state["tr"] < 7: do_tr()
    if state["ml"] is None: do_ml_issue()
    if not state["f"]: do_ml_check()
    force_proc(63)
    stamp(6)
    for r in range(12): I(f"v_mul_f32 v{PV+r}, v{FV}, v{PV+r}")
    for r in range(6): I(f"v_cvt_pk_bf16_f32 v{8+r}, v{PV+2*r}, v{PV+2*r+1}")
    I("s_mov_b32 exec_lo, 0x00ff00ff"); I("s_mov_b32 exec_hi, 0xff00ff00")
    ws_ = [I(f"ds_write_b64 v{XT+16}, v[{8+2*j}:{9+2*j}] offset:{128*j}") for j in range(3)]
    I("s_mov_b64 exec, -1")
    p.wait(*ws_)
    I("s_barrier")
    ra = [I(f"ds_read_b128 v[{OA+4*t}:{OA+4*t+3}], v{XT+17} offset:{64*t}") for t in range(6)]
    I(f"s_lshl_b32 {T0}, {SF}, 1"); I(f"s_add_u32 {T0}, {T0}, {YROW}")
    I(f"s_lshl_b32 {T1}, {SH}, 1"); I(f"s_add_u32 {T1}, {T1}, {YROW}")
    def post(q_):
        da = YA + 8 * q_; db = da + 4
        I(f"v_add_f32 v{da}, v{da}, v{da+1}"); I(f"v_add_f32 v{db}, v{db}, v{db+1}")
        I(f"v_add_f32 v{da+2}, v{da+2}, v{da+3}"); I(f"v_add_f32 v{db+2}, v{db+2}, v{db+3}")
        I(f"v_add_f32 v{da}, v{da}, v{da+2}"); I(f"v_add_f32 v{db}, v{db}, v{db+2}")
        I(f"v_permlane16_swap_b32 v{da}, v{db}")
        I(f"v_add_f32 v{da}, v{da}, v{db}")
        I(f"v_min_u32 v{da}, 0xfffffffe, v{da}")
        I("s_mov_b32 exec_hi, 0")
        if q_ < 4: I(f"buffer_store_dword v{da}, v{XT+18}, {sWs}, {T0} offen offset:{128*q_} sc1")
        else: I(f"buffer_store_dword v{da}, v{XT+18}, {sWs}, {T1} offen sc1")
        I("s_mov_b32 exec_hi, -1")
    for q_ in range(5):
        for t in range(6):
            p.wait(ra[t])
            for c in (2 * q_, 2 * q_ + 1):
                d = YA + 4 * c; a = (t * 10 + c) * 4
                I(f"v_mfma_f32_16x16x32_bf16 v[{d}:{d+3}], v[{OA+4*t}:{OA+4*t+3}], a[{a}:{a+3}], v[{d}:{d+3}]")
            if q_ > 0 and t == 3: post(q_ - 1)
    post(4)
    stamp(7)
    I(f"s_cmp_lg_u32 {W}, 0"); I("s_cbranch_scc1 L_fin")
    I("s_cmp_ge_u32 s2, 80"); I("s_cbranch_scc1 L_fin")
    I(f"s_mul_i32 {T0}, s2, 205"); I(f"s_lshr_b32 {T0}, {T0}, 12"); I(f"s_mul_i32 {T1}, {T0}, 20"); I(f"s_sub_u32 {T1}, s2, {T1}")
    I(f"s_mul_i32 {T0}, {T0}, {64*2560}"); I(f"s_lshl_b32 {T1}, {T1}, 7"); I(f"s_add_u32 {T0}, {T0}, {T1}"); I(f"s_add_u32 {T0}, {T0}, {Y_OFF}")
    I("v_lshrrev_b32 v8, 3, v0"); I("v_mul_u32_u24 v8, 2560, v8"); I("v_and_b32 v9, 7, v0"); I("v_lshl_add_u32 v8, v9, 4, v8")
    I(f"s_mov_b32 {CNT}, {spin}")
    p.label("L_cpoll")
    C = 64
    for i in range(8):
        I(f"s_add_u32 {T1}, {T0}, {i*8*2560}")
        I(f"buffer_load_dwordx4 v[{C+4*i}:{C+4*i+3}], v8, {sWs}, {T1} offen sc1")
    p.wait_all()
    I(f"v_max3_u32 v10, v{C}, v{C+1}, v{C+2}"); I(f"v_max3_u32 v11, v{C+3}, v{C+4}, v{C+5}")
    k = 6
    while k < 32:
        I(f"v_max3_u32 v{10 + ((k >> 1) & 1)}, v{10 + ((k >> 1) & 1)}, v{C+k}, v{C+k+1}"); k += 2
    I("v_max_u32 v10, v10, v11")
    I("v_cmp_eq_u32 vcc, -1, v10")
    I("s_cbranch_vccz L_cdone")
    I(f"s_sub_u32 {CNT}, {CNT}, 1"); I(f"s_cmp_lg_u32 {CNT}, 0"); I("s_cbranch_scc1 L_cpoll")
    p.label("L_cdone")
    for (a, b_) in [(0, 1), (2, 3), (4, 5), (6, 7), (0, 2), (4, 6), (0, 4)]:
        for r in range(4): I(f"v_add_f32 v{C+4*a+r}, v{C+4*a+r}, v{C+4*b_+r}")
    for r in range(4): I(f"v_add_f32_dpp v{C+r}, v{C+r}, v{C+r} row_ror:8 {DPPM}")
    for st_ in (16, 32):
        for r in range(4): I(f"v_mov_b32 v{C+4+r}, v{C+r}")
        for r in range(4): I(f"v_permlane{st_}_swap_b32 v{C+r}, v{C+4+r}")
        for r in range(4): I(f"v_add_f32 v{C+r}, v{C+r}, v{C+4+r}")
    I(f"v_lshlrev_b32 v10, 16, v{XT+14}"); I(f"v_and_b32 v11, 0xffff0000, v{XT+14}")
    I(f"v_lshlrev_b32 v12, 16, v{XT+15}"); I(f"v_and_b32 v13, 0xffff0000, v{XT+15}")
    for r in range(4): I(f"v_add_f32 v{C+r}, v{C+r}, v{10+r}")
    I(f"v_cvt_pk_bf16_f32 v10, v{C}, v{C+1}"); I(f"v_cvt_pk_bf16_f32 v11, v{C+2}, v{C+3}")
    I(f"s_lshl_b32 {T0}, s2, 6")
    I("s_mov_b64 exec, 0xff")
    I(f"buffer_store_dwordx2 v[10:11], v{XT+10}, {sOut}, {T0} offen")
    I("s_mov_b64 exec, -1")
    p.label("L_fin")
    if stamps:
        I("s_waitcnt vmcnt(0)")
        stamp(1)
        I("s_waitcnt lgkmcnt(0)")
        I("s_mov_b32 s4, s94"); I("s_mov_b32 s5, s95")
        I("s_getreg_b32 s20, hwreg(HW_REG_XCC_ID)")
        for r in range(16): I(f"v_mov_b32 v{64+r}, s{4+r}")
        I("v_mov_b32 v80, s20"); I("v_mov_b32 v81, -1")
        I(f"s_lshl_b32 {T0}, s2, 2"); I(f"s_add_u32 {T0}, {T0}, {W}"); I(f"s_lshl_b32 {T0}, {T0}, 7")
        I(f"v_mov_b32 v8, {T0}")
        I("s_add_u32 s26, s26, 0x40000000"); I("s_addc_u32 s27, s27, 0")
        I("s_mov_b64 exec, 1")
        for r in range(4): I(f"global_store_dwordx4 v8, v[{64+4*r}:{67+4*r}], s[26:27] offset:{16*r}")
        I("global_store_dwordx2 v8, v[80:81], s[26:27] offset:64")
    p.label("L_end")
    I("s_endpgm")
    for name, body in fallbacks:
        p.label(name)
        p.raw(f"    s_mov_b32 {CNT}, {spin}")
        p.label(name + "_loop")
        p.raw("    s_sleep 2")
        for b_ in body: p.raw("    " + b_)
        p.raw("    s_nop 4")
        p.raw(f"    s_cbranch_vccz {name}_ret")
        p.raw(f"    s_sub_u32 {CNT}, {CNT}, 1"); p.raw(f"    s_cmp_lg_u32 {CNT}, 0"); p.raw(f"    s_cbranch_scc1 {name}_loop")
        p.raw(f"    s_branch {name}_ret")
    p.raw('.section .rodata,"a"'); p.raw(".p2align 6"); p.raw(f".amdhsa_kernel {KN}")
    for l_ in [".amdhsa_next_free_vgpr 512", ".amdhsa_next_free_sgpr 102", ".amdhsa_accum_offset 256",
               ".amdhsa_group_segment_fixed_size 0", ".amdhsa_kernarg_size 96", ".amdhsa_user_sgpr_count 2",
               ".amdhsa_user_sgpr_kernarg_segment_ptr 1", ".amdhsa_system_sgpr_workgroup_id_x 1",
               ".amdhsa_float_denorm_mode_32 3", ".amdhsa_float_denorm_mode_16_64 3"]:
        p.raw("  " + l_)
    p.raw(".end_amdhsa_kernel")
    return p.text()

if __name__ == "__main__":
    open("k1.s", "w").write(gen())
    open("k1s.s", "w").write(gen(stamps=True))
```
